```python
import torch

def _softmax(x, axis=-1):
    return torch.softmax(x, dim=axis)
def _gelu(x):
    return torch.nn.functional.gelu(x, approximate="tanh")
def _silu(x):
    return torch.nn.functional.silu(x)
def _sigmoid(x):
    return torch.sigmoid(x)
def _layernorm(x, axis=-1, eps=1e-5):
    m = x.mean(dim=axis, keepdim=True)
    v = x.var(dim=axis, keepdim=True, unbiased=False)
    return (x - m) / torch.sqrt(v + eps)
def _scatter_add(tgt, idx, src, axis=0):
    return tgt.clone().index_add_(axis, idx, src)
def _segment_sum(src, seg, n):
    out = torch.zeros((n,) + src.shape[1:], dtype=src.dtype)
    return out.index_add_(0, seg, src)
def _pad(x, pw):
    flat = tuple(v for pair in reversed(pw) for v in pair)
    return torch.nn.functional.pad(x, flat)

kernel_name = 'standalone__detection_seg_dino__vision'

def setup_inputs():

    _w = (lambda a: (lambda t: t.to(torch.bfloat16) if t.is_floating_point() else t)(torch.as_tensor(a)))
    H = W = (224 // 2) * 2
    C = 192
    Nq = 16
    sc = C ** -0.5
    return {
        "q": _w((lambda *s: torch.randn(*s, dtype=torch.bfloat16) * 0.05)(1, Nq, C)),
        "f0": _w((lambda *s: torch.randn(*s, dtype=torch.bfloat16) * 0.8)(1, H, W, C)),
        "f1": _w((lambda *s: torch.randn(*s, dtype=torch.bfloat16) * 0.8)(1, H // 2, W // 2, C)),
        "wq": _w((lambda *s: torch.randn(*s, dtype=torch.bfloat16) * 1.6)(C, C) * sc),
        "wk": _w((lambda *s: torch.randn(*s, dtype=torch.bfloat16) * 1.6)(C, C) * sc),
        "wv": _w((lambda *s: torch.randn(*s, dtype=torch.bfloat16) * 0.8)(C, C) * sc),
        "wo": _w((lambda *s: torch.randn(*s, dtype=torch.bfloat16) * 0.8)(C, C) * sc),
    }

def reference(q, f0, f1, wq, wk, wv, wo):
    B, H, W, C = f0.shape
    f1u = (lambda x, n, axis: torch.repeat_interleave(x, n, dim=axis))((lambda x, n, axis: torch.repeat_interleave(x, n, dim=axis))(f1, 2, axis=1), 2, axis=2)
    fused = f0 + f1u
    feats = _layernorm(fused.reshape(B, H * W, C), axis=-1)
    qn = _layernorm(q, axis=-1)
    Q = torch.einsum("bnc,cd->bnd", qn, wq)
    K = torch.einsum("bmc,cd->bmd", feats, wk)
    V = torch.einsum("bmc,cd->bmd", feats, wv)
    scale = C ** -0.5
    logits = torch.einsum("bnd,bmd->bnm", Q, K) * scale
    attn = _softmax(logits, axis=-1)
    ctx = torch.einsum("bnm,bmd->bnd", attn, V)
    return q + torch.einsum("bnd,dc->bnc", ctx, wo)
```

```python
import re

_REG = re.compile(r"^(-|abs\()?([vsa])(\d+)\)?$")
_RNG = re.compile(r"^([vsa])\[(\d+):(\d+)\]$")


def regs_of(tok):
    tok = tok.strip()
    if tok.startswith("-"):
        tok = tok[1:]
    if tok.startswith("abs(") and tok.endswith(")"):
        tok = tok[4:-1]
    if tok.startswith("|") and tok.endswith("|"):
        tok = tok[1:-1]
    m = _RNG.match(tok)
    if m:
        return [(m.group(1), i) for i in range(int(m.group(2)), int(m.group(3)) + 1)]
    m = re.match(r"^([vsa])(\d+)$", tok)
    if m:
        return [(m.group(1), int(m.group(2)))]
    if tok == "vcc":
        return [("s", 106), ("s", 107)]
    if tok in ("vcc_lo",):
        return [("s", 106)]
    if tok in ("vcc_hi",):
        return [("s", 107)]
    if tok in ("exec", "exec_lo", "exec_hi"):
        return [("x", 0)]
    if tok == "m0":
        return [("m", 0)]
    return []


TRANS = ("v_exp_f32", "v_log_f32", "v_rcp_f32", "v_rsq_f32", "v_sqrt_f32", "v_sin_f32", "v_cos_f32",
         "v_rcp_iflag_f32")


def v(i, n=1):
    return f"v{i}" if n == 1 else f"v[{i}:{i + n - 1}]"


def s(i, n=1):
    return f"s{i}" if n == 1 else f"s[{i}:{i + n - 1}]"


class Ins:
    __slots__ = ("mn", "dst", "src", "kind", "passes", "srcC", "text", "dpp")


class Asm:
    def __init__(self):
        self.lines = []
        self.win = []
        self.maxv = -1
        self.maxs = -1
        self.nins = 0

    def raw(self, text):
        self.lines.append(text)

    def comment(self, text):
        self.lines.append("    ; " + text)

    def label(self, name):
        self.flush()
        self.lines.append(f"{name}:")
        self.win = []

    def flush(self):
        need = 0
        for d, p in enumerate(reversed(self.win)):
            if p is None:
                continue
            worst = 0
            if p.kind == "mfma":
                worst = 4 + 2 * p.passes if not p.sgemm_like() else 2 + p.passes
            elif p.kind == "valu":
                worst = 5 if any(r[0] in "sx" for r in p.dst) else (3 if p.mn.startswith("v_dot") else 2)
            elif p.kind == "salu" and any(r[0] == "m" for r in p.dst):
                worst = 1
            elif p.kind == "store":
                worst = 2
            need = max(need, worst - d)
        self.nop(need)

    def nop(self, n):
        while n > 0:
            k = min(n, 16)
            self.lines.append(f"    s_nop {k - 1}")
            self.win.extend([None] * k)
            self.nins += 1
            n -= k
        self.win = self.win[-40:]

    def classify(self, mn, ops, mods):
        i = Ins()
        i.mn = mn
        i.passes = 0
        i.srcC = []
        i.dpp = ("quad_perm" in mods or "row_" in mods or "wave_" in mods or "_dpp" in mn)
        R = [regs_of(o) for o in ops]
        flat = lambda l: [r for x in l for r in x]
        if mn.startswith("v_mfma"):
            i.kind = "mfma"
            i.dst = R[0]
            i.src = flat(R[1:])
            i.srcC = R[3]
            if "16x16x4_f32" in mn:
                i.passes = 8
            elif "32x32x2_f32" in mn:
                i.passes = 16
            elif "16x16" in mn:
                i.passes = 4
            elif "32x32" in mn:
                i.passes = 8
            else:
                raise ValueError(mn)
        elif mn.startswith(("buffer_store", "global_store")):
            i.kind = "store"
            i.dst = []
            i.src = flat(R)
        elif mn.startswith(("buffer_atomic", "global_atomic")):
            i.kind = "store"
            if "sc0" in mods:
                i.dst = R[0]
                i.src = flat(R[1:])
                if mn.startswith("buffer_atomic"):
                    i.src = flat(R)
            else:
                i.dst = []
                i.src = flat(R)
        elif mn.startswith(("buffer_load", "global_load")):
            i.kind = "load"
            if " lds" in " " + mods or "_lds_" in mn:
                i.kind = "dma"
                i.dst = []
                i.src = flat(R) + [("m", 0)]
            else:
                i.dst = R[0]
                i.src = flat(R[1:])
        elif mn.startswith(("buffer_wbl2", "buffer_inv")):
            i.kind = "other"
            i.dst, i.src = [], []
        elif mn.startswith("ds_"):
            i.kind = "ds"
            if mn.startswith(("ds_read", "ds_bpermute", "ds_permute", "ds_swizzle")) or "_rtn" in mn:
                i.dst = R[0]
                i.src = flat(R[1:])
            else:
                i.dst = []
                i.src = flat(R)
        elif mn.startswith("v_"):
            i.kind = "valu"
            if mn.startswith("v_cmp"):
                i.dst = R[0]
                i.src = flat(R[1:])
            elif mn.startswith(("v_permlane16_swap", "v_permlane32_swap", "v_swap")):
                i.dst = flat(R)
                i.src = flat(R)
            elif mn.startswith(("v_add_co", "v_sub_co", "v_addc_co", "v_subb_co", "v_subrev_co", "v_mad_u64_u32")):
                i.dst = R[0] + R[1]
                i.src = flat(R[2:])
            elif mn.startswith(("v_fmac", "v_dot2c", "v_mac", "v_pk_fmac")):
                i.dst = R[0]
                i.src = flat(R)
            elif mn.startswith("v_cndmask") and len(ops) == 3:
                i.dst = R[0]
                i.src = flat(R[1:]) + regs_of("vcc")
            else:
                i.dst = R[0]
                i.src = flat(R[1:])
                if i.dpp:
                    i.src = i.src + R[0]
        elif mn.startswith("s_"):
            i.kind = "salu"
            if mn.startswith(("s_cmp", "s_waitcnt", "s_barrier", "s_branch", "s_cbranch", "s_endpgm", "s_nop",
                              "s_setprio", "s_sleep", "s_bitcmp")):
                i.dst = []
                i.src = flat(R)
            elif "saveexec" in mn:
                i.dst = R[0] + [("x", 0)]
                i.src = flat(R[1:])
            else:
                i.dst = R[0] if R else []
                i.src = flat(R[1:])
        else:
            raise ValueError("unknown mnemonic " + mn)
        return i

    def required(self, p, c, sgemm):
        need = 0
        pd = set(p.dst)
        cs = set(c.src)
        cd = set(c.dst)
        if p.kind == "valu" and p.mn.startswith("v_dot"):
            if pd & (cs | cd):
                same = c.mn == p.mn
                if same:
                    toks = [x.strip() for x in c.text.split(None, 1)[1].split(",")]
                    ab = set(regs_of(toks[1]) + regs_of(toks[2]))
                    if p.mn.startswith("v_dot2c"):
                        ab = set(regs_of(toks[1]) + regs_of(toks[2]))
                    if pd & ab:
                        need = max(need, 3)
                else:
                    need = max(need, 3)
        if p.kind == "valu":
            vw = {r for r in pd if r[0] in "va"}
            sw = {r for r in pd if r[0] == "s"}
            if vw & cs:
                if c.kind == "mfma":
                    need = max(need, 2)
                if c.kind == "valu" and c.dpp:
                    need = max(need, 2)
                if c.mn.startswith("v_permlane"):
                    need = max(need, 2)
                if c.mn.startswith(("v_readfirstlane", "v_readlane")):
                    need = max(need, 1)
                if p.mn.replace("_e32", "").replace("_e64", "") in TRANS and c.mn not in TRANS:
                    need = max(need, 1)
                if "sdwa" in p.mn or "op_sel" in p.text:
                    need = max(need, 1)
            if sw & cs:
                if c.kind == "valu":
                    need = max(need, 2)
                    if c.mn.startswith(("v_readlane", "v_writelane")):
                        need = max(need, 4)
                if c.kind in ("load", "store", "dma"):
                    need = max(need, 5)
                if c.kind == "salu":
                    need = max(need, 1)
        elif p.kind == "salu":
            if ("m", 0) in pd and c.kind == "dma":
                need = max(need, 1)
        elif p.kind == "mfma":
            P = p.passes
            sg = p.sgemm_like()
            if pd & (cs | cd):
                if c.kind == "mfma":
                    cC = set(c.srcC)
                    cAB = set(c.src) - cC
                    if pd & cAB:
                        need = max(need, (2 + P) if sg else (4 + P))
                    if pd & cC:
                        same = (list(p.dst) == list(c.srcC)) and (p.passes == c.passes) and (sg == c.sgemm_like())
                        if not same:
                            need = max(need, P if sg else P + 2)
                    if (pd & cd) and not (pd & cC):
                        need = max(need, (2 + P) if sg else (4 + P))
                else:
                    need = max(need, (2 + P) if sg else (4 + P))
            if c.kind == "valu" and (set(p.srcC) & cd) and not sg:
                need = max(need, P - 1)
        elif p.kind == "store":
            wide = any(x in p.mn for x in ("x3", "x4"))
            if wide and (set(p.src) & cd) and c.kind in ("valu", "load", "ds", "mfma"):
                vv = {r for r in p.src if r[0] in "va"} & cd
                if vv:
                    need = max(need, 2)
        return need

    def op(self, text):
        text = text.strip()
        body = text.split(";")[0].strip()
        parts = body.split(None, 1)
        mn = parts[0]
        rest = parts[1] if len(parts) > 1 else ""
        toks = []
        depth = 0
        cur = ""
        for ch in rest:
            if ch == "[":
                depth += 1
            if ch == "]":
                depth -= 1
            if ch == "," and depth == 0:
                toks.append(cur.strip())
                cur = ""
            else:
                cur += ch
        if cur.strip():
            toks.append(cur.strip())
        mods = ""
        if toks:
            last = toks[-1].split(None, 1)
            toks[-1] = last[0]
            if len(last) > 1:
                mods = last[1]
        c = self.classify(mn, toks, mods)
        c.text = body
        if mn.startswith(("s_branch", "s_cbranch")):
            self.flush()
        need = 0
        for d, p in enumerate(reversed(self.win)):
            if p is None:
                continue
            r = self.required(p, c, None)
            need = max(need, r - d)
        if need > 0:
            self.nop(need)
        self.lines.append("    " + text)
        self.nins += 1
        for r in c.dst + c.src:
            if r[0] == "v":
                self.maxv = max(self.maxv, r[1])
            if r[0] == "s" and r[1] < 106:
                self.maxs = max(self.maxs, r[1])
        self.win.append(c)
        self.win = self.win[-40:]
        if mn.startswith(("s_branch", "s_cbranch")):
            pass
        return c

    def __call__(self, text):
        for line in text.strip().split("\n"):
            line = line.strip()
            if not line or line.startswith(";"):
                continue
            self.op(line)

    def text(self):
        return "\n".join(self.lines) + "\n"


def _sg(self):
    return self.mn.endswith("_f32") and ("x4_f32" in self.mn or "x2_f32" in self.mn)


Ins.sgemm_like = _sg
```

```python
import sys
sys.path.insert(0, "gen")
from asmlib import *

HDR = open("standalone__detection_seg_dino__vision.s.ref").read().split("; Override launch")[0]

NPROD = 12
NSTR = 224
NREP = 32
WS_QK = 0
WS_FLAG = 1 << 16
WS_PART = 1 << 20
WS_ML = 4 << 20
WS_STAMP = 128 << 20
WS_BYTES = 268435456
L_QK = 0
L_PB = 6144
L_PU = 13312
L_MX = 15360
L_LB = 16640
L_TB = 17920
L_OUT = 19200
L_X1 = 25600
L_X0 = 47104
LDS_MAIN = 133120
LP_QN = 0
LP_QB = 6144
LP_W = 12288
SCALE_LOG2E = (192 ** -0.5) * 1.4426950408889634
import struct
def f2u(x):
    return struct.unpack("<I", struct.pack("<f", x))[0]

STAMPS = False


def kd(name, nv, ns):
    acc = (nv + 3) // 4 * 4
    return f""".section .rodata,"a"
.p2align 6
.amdhsa_kernel {name}
  .amdhsa_next_free_vgpr {nv}
  .amdhsa_next_free_sgpr {ns}
  .amdhsa_accum_offset {acc}
  .amdhsa_group_segment_fixed_size 0
  .amdhsa_kernarg_size 80
  .amdhsa_user_sgpr_count 2
  .amdhsa_user_sgpr_kernarg_segment_ptr 1
  .amdhsa_system_sgpr_workgroup_id_x 1
  .amdhsa_float_denorm_mode_32 3
.end_amdhsa_kernel
.text
"""


def srd(a, base, lo, nbytes, add=0):
    if add:
        a(f"s_add_u32 s{base}, s{lo}, {add}")
        a(f"s_addc_u32 s{base+1}, s{lo+1}, 0")
    else:
        a(f"s_mov_b32 s{base}, s{lo}")
        a(f"s_mov_b32 s{base+1}, s{lo+1}")
    a(f"s_mov_b32 s{base+2}, {nbytes}")
    a(f"s_mov_b32 s{base+3}, 0x20000")


def stamp(a, idx):
    if not STAMPS:
        return
    a("s_memrealtime s[90:91]")
    a("s_waitcnt lgkmcnt(0)")
    a("v_mov_b32 v124, s90")
    a("v_mov_b32 v125, s91")
    a(f"v_mov_b32 v126, {idx*8}")
    a("s_mov_b64 s[92:93], exec")
    a("s_mov_b64 exec, 1")
    a("buffer_store_dwordx2 v[124:125], v126, s[84:87], s88 offen")
    a("s_mov_b64 exec, s[92:93]")


def slot_patterns(a, vlane, rr, vlr, vk, vt):
    a(f"v_add_u32 v{vt}, {64*rr}, v{vlane}")
    a(f"v_mul_u32_u24 v{vlr}, 2731, v{vt}")
    a(f"v_lshrrev_b32 v{vlr}, 16, v{vlr}")
    a(f"v_mul_u32_u24 v{vk}, 24, v{vlr}")
    a(f"v_sub_u32 v{vk}, v{vt}, v{vk}")


def weight_dma(a, srd_w, wave_s, lds_base, vlane, vtmp, tag):
    P = vtmp
    for rr in range(3):
        slot_patterns(a, vlane, rr, P + 6, P + 7, P + 8)
        a(f"v_and_b32 v{P+8}, 2, v{P+6}")
        a(f"v_xor_b32 v{P+7}, v{P+7}, v{P+8}")
        a(f"v_mul_u32_u24 v{P+6}, 384, v{P+6}")
        a(f"v_lshl_add_u32 v{P+rr}, v{P+7}, 4, v{P+6}")
        a(f"v_xor_b32 v{P+7}, 4, v{P+7}")
        a(f"v_lshl_add_u32 v{P+3+rr}, v{P+7}, 4, v{P+6}")
    return P


def weight_dma_issue(a, srd_w, wave_s, lds_base, P):
    a(f"s_mul_i32 s70, s{wave_s}, 6144")
    a("s_add_u32 s71, s70, 3072")
    if lds_base:
        a(f"s_add_u32 s72, s70, {lds_base}")
    else:
        a("s_mov_b32 s72, s70")
    for q in range(2):
        for rr in range(3):
            a(f"s_add_u32 m0, s72, {(3*q+rr)*1024}")
            a(f"buffer_load_dwordx4 v{P+3*q+rr}, s[{srd_w}:{srd_w+3}], s{70+q} offen lds")


def tr_weight_addr(a, vdst, vlane, wave_s, lds_base, vt):
    a(f"v_lshrrev_b32 v{vt}, 4, v{vlane}")
    a(f"v_bfe_u32 v{vt+1}, v{vlane}, 2, 2")
    a(f"v_lshl_add_u32 v{vt+2}, v{vt}, 3, v{vt+1}")
    a(f"v_mul_u32_u24 v{vdst}, 384, v{vt+2}")
    a(f"v_and_b32 v{vt+2}, 2, v{vt+1}")
    a(f"v_and_b32 v{vt}, 1, v{vt}")
    a(f"v_lshl_or_b32 v{vt+2}, v{vt}, 2, v{vt+2}")
    a(f"v_bfe_u32 v{vt}, v{vlane}, 1, 1")
    a(f"s_lshl_b32 s73, s{wave_s}, 1")
    a(f"v_add_u32 v{vt}, s73, v{vt}")
    a(f"v_xor_b32 v{vt}, v{vt}, v{vt+2}")
    a(f"v_lshl_add_u32 v{vdst}, v{vt}, 4, v{vdst}")
    a(f"v_and_b32 v{vt}, 1, v{vlane}")
    a(f"v_lshl_add_u32 v{vdst}, v{vt}, 3, v{vdst}")
    if lds_base:
        a(f"v_add_u32 v{vdst}, {lds_base}, v{vdst}")


def tr_weight_read(a, vdst0, vaddr):
    for s_ in range(6):
        for h in range(2):
            r = vdst0 + 4 * s_ + 2 * h
            a(f"ds_read_b64_tr_b16 v[{r}:{r+1}], v{vaddr} offset:{(32*s_+4*h)*384}")


def opnd_write_addr(a, vdst, vlane, wave_s, base, vt):
    a(f"v_lshrrev_b32 v{vt}, 5, v{vlane}")
    a(f"v_lshlrev_b32 v{vdst}, 8, v{vt}")
    a(f"v_and_b32 v{vt}, 15, v{vlane}")
    a(f"v_lshl_add_u32 v{vdst}, v{vt}, 4, v{vdst}")
    a(f"v_bfe_u32 v{vt}, v{vlane}, 4, 1")
    a(f"v_lshl_add_u32 v{vdst}, v{vt}, 3, v{vdst}")
    a(f"s_lshl_b32 s73, s{wave_s}, 9")
    if base:
        a(f"s_add_u32 s73, s73, {base}")
    a(f"v_add_u32 v{vdst}, s73, v{vdst}")


def xsum(a, v_, vt, op="v_add_f32"):
    a(f"v_mov_b32 v{vt}, v{v_}")
    a(f"v_permlane16_swap_b32 v{v_}, v{vt}")
    a(f"{op} v{v_}, v{v_}, v{vt}")
    a(f"v_mov_b32 v{vt}, v{v_}")
    a(f"v_permlane32_swap_b32 v{v_}, v{vt}")
    a(f"{op} v{v_}, v{v_}, v{vt}")


def emit_producer(a):
    a.label("L_prod")
    srd(a, 24, 10, 73728)
    srd(a, 28, 4, 6144)
    srd(a, 32, 12, 73728)
    a("s_cmp_ge_u32 s3, 12")
    a("s_cbranch_scc1 L_p_hi")
    P = weight_dma(a, 24, 3, LP_W, 1, 10, "wq")
    weight_dma_issue(a, 24, 3, LP_W, P)
    tr_weight_addr(a, 2, 1, 3, LP_W, 4)
    opnd_write_addr(a, 3, 1, 3, LP_QB, 4)
    a("v_lshlrev_b32 v8, 4, v1")
    a("s_waitcnt vmcnt(0)")
    a("s_barrier")
    for s_ in range(6):
        a(f"ds_read_b128 v[{20+4*s_}:{23+4*s_}], v8 offset:{LP_QN + 1024*s_}")
    tr_weight_read(a, 44, 2)
    a("s_waitcnt lgkmcnt(0)")
    a("v_mfma_f32_16x16x32_bf16 v[68:71], v[44:47], v[20:23], 0")
    for s_ in range(1, 6):
        a(f"v_mfma_f32_16x16x32_bf16 v[68:71], v[{44+4*s_}:{47+4*s_}], v[{20+4*s_}:{23+4*s_}], v[68:71]")
    a("v_cvt_pk_bf16_f32 v72, v68, v69")
    a("v_cvt_pk_bf16_f32 v73, v70, v71")
    a("ds_write_b64 v3, v[72:73]")
    a("s_waitcnt lgkmcnt(0)")
    a("s_barrier")
    a("s_endpgm")
    a.label("L_p_hi")
    a("s_cmp_eq_u32 s3, 12")
    a("s_cbranch_scc1 L_p_ln")
    a("s_cmp_eq_u32 s3, 13")
    a("s_cbranch_scc1 L_p_s2")
    a("s_endpgm")
    a.label("L_p_ln")
    a("v_and_b32 v2, 15, v1")
    a("v_lshrrev_b32 v3, 4, v1")
    a("v_mul_u32_u24 v4, 384, v2")
    a("v_lshl_add_u32 v4, v3, 4, v4")
    for s_ in range(6):
        a(f"buffer_load_dwordx4 v[{20+4*s_}:{23+4*s_}], v4, s[28:31], 0 offen offset:{64*s_}")
    a("v_lshlrev_b32 v8, 4, v1")
    a("s_mov_b32 s40, 0x3f803f80")
    a("v_mov_b32 v10, 0"); a("v_mov_b32 v11, 0")
    a("s_waitcnt vmcnt(0)")
    for k in range(24):
        a(f"v_dot2_f32_bf16 v{10 + (k&1)}, v{20+k}, s40, v{10 + (k&1)}")
    a("v_add_f32 v10, v10, v11")
    xsum(a, 10, 12)
    a(f"v_mul_f32 v10, {hex(f2u(1/192))}, v10")
    a("v_mov_b32 v11, 0"); a("v_mov_b32 v13, 0")
    for k in range(24):
        a(f"v_lshlrev_b32 v14, 16, v{20+k}")
        a(f"v_and_b32 v15, 0xffff0000, v{20+k}")
        a("v_sub_f32 v14, v14, v10")
        a("v_sub_f32 v15, v15, v10")
        a("v_fmac_f32 v11, v14, v14")
        a("v_fmac_f32 v13, v15, v15")
    a("v_add_f32 v11, v11, v13")
    xsum(a, 11, 12)
    a(f"v_mov_b32 v12, {hex(f2u(1e-5))}")
    a(f"v_mov_b32 v13, {hex(f2u(1/192))}")
    a("v_fmac_f32 v12, v11, v13")
    a("v_rsq_f32 v12, v12")
    for k in range(24):
        a(f"v_lshlrev_b32 v14, 16, v{20+k}")
        a(f"v_and_b32 v15, 0xffff0000, v{20+k}")
        a("v_sub_f32 v14, v14, v10")
        a("v_sub_f32 v15, v15, v10")
        a("v_mul_f32 v14, v14, v12")
        a("v_mul_f32 v15, v15, v12")
        a(f"v_cvt_pk_bf16_f32 v{20+k}, v14, v15")
    for s_ in range(6):
        a(f"ds_write_b128 v8, v[{20+4*s_}:{23+4*s_}] offset:{LP_QN + 1024*s_}")
    a("s_waitcnt lgkmcnt(0)")
    a("s_barrier")
    a("s_barrier")
    a("s_endpgm")
    a.label("L_p_s2")
    a("v_and_b32 v2, 15, v1")
    a("v_lshrrev_b32 v3, 4, v1")
    a("v_mul_u32_u24 v4, 384, v2")
    a("v_lshl_add_u32 v4, v3, 4, v4")
    a("s_mul_i32 s40, s2, 6144")
    for s_ in range(6):
        a(f"buffer_load_dwordx4 v[{44+4*s_}:{47+4*s_}], v4, s[32:35], s40 offen offset:{64*s_}")
    srd(a, 36, 22, 1 << 20)
    a("v_lshlrev_b32 v8, 4, v1")
    opnd_write_addr(a, 3, 1, 2, WS_QK, 4)
    a("v_lshlrev_b32 v9, 7, v1")
    a("s_lshl_b32 s41, s2, 3")
    a(f"s_add_u32 s41, s41, {WS_FLAG}")
    a("v_add_u32 v9, s41, v9")
    a("s_barrier")
    a("s_barrier")
    for s_ in range(6):
        a(f"ds_read_b128 v[{20+4*s_}:{23+4*s_}], v8 offset:{LP_QB + 1024*s_}")
    a("s_waitcnt vmcnt(0) lgkmcnt(0)")
    a("v_mfma_f32_16x16x32_bf16 v[68:71], v[44:47], v[20:23], 0")
    for s_ in range(1, 6):
        a(f"v_mfma_f32_16x16x32_bf16 v[68:71], v[{44+4*s_}:{47+4*s_}], v[{20+4*s_}:{23+4*s_}], v[68:71]")
    a(f"s_mov_b32 s42, {hex(f2u(SCALE_LOG2E))}")
    for r in range(4):
        a(f"v_mul_f32 v{68+r}, s42, v{68+r}")
    a("v_cvt_pk_bf16_f32 v72, v68, v69")
    a("v_cvt_pk_bf16_f32 v73, v70, v71")
    a("buffer_store_dwordx2 v[72:73], v3, s[36:39], 0 offen sc0 sc1")
    a("s_waitcnt vmcnt(0)")
    a("s_memrealtime s[44:45]")
    a("s_waitcnt lgkmcnt(0)")
    a("v_mov_b32 v72, s44")
    a("v_mov_b32 v73, s45")
    a("s_mov_b32 exec_hi, 0")
    a("buffer_store_dwordx2 v[72:73], v9, s[36:39], 0 offen sc0 sc1")
    a("s_mov_b64 exec, -1")
    stamp(a, 17)
    a("s_endpgm")


def emit_stream(a):
    a.label("L_stream")
    a(f"s_sub_u32 s33, s2, {NPROD}")
    a("s_cmp_ge_u32 s3, 14")
    a("s_cbranch_scc1 L_s_helper")
    srd(a, 24, 6, 19267584)
    srd(a, 28, 8, 4816896)
    for rr in range(3):
        slot_patterns(a, 1, rr, 4, 5, 3)
        if rr < 2:
            a("s_and_b32 s40, s3, 3"); a("s_lshl_b32 s40, s40, 1")
            a("v_xor_b32 v6, s40, v5")
            a("v_mul_u32_u24 v7, 384, v4")
            a(f"v_lshl_add_u32 v{13+rr}, v6, 4, v7")
        a("v_and_b32 v6, 6, v4")
        a("v_xor_b32 v5, v5, v6")
        a("v_lshrrev_b32 v6, 2, v4")
        a("v_mul_u32_u24 v6, 768, v6")
        a("v_lshl_add_u32 v7, v5, 4, v6")
        a("v_bfe_u32 v6, v4, 1, 1")
        a("v_mul_u32_u24 v6, 86016, v6")
        a("v_add_u32 v7, v7, v6")
        a("v_and_b32 v6, 1, v4")
        a("v_mul_u32_u24 v6, 384, v6")
        a(f"v_add_u32 v{10+rr}, v7, v6")
    a("s_lshr_b32 s40, s33, 1"); a("s_mul_i32 s40, s40, 172032")
    a("s_and_b32 s41, s33, 1"); a("s_mul_i32 s41, s41, 43008"); a("s_add_u32 s40, s40, s41")
    a("s_mul_i32 s41, s3, 3072"); a("s_add_u32 s40, s40, s41")
    a("s_add_u32 s42, s40, 1536")
    a("s_mul_i32 s43, s33, 21504"); a("s_mul_i32 s41, s3, 1536"); a("s_add_u32 s43, s43, s41")
    a("s_mul_i32 s44, s3, 6144"); a(f"s_add_u32 s44, s44, {L_X0}")
    a(f"s_add_u32 s45, s41, {L_X1}")
    for q in range(2):
        for rr in range(3):
            a(f"s_add_u32 m0, s44, {(3*q+rr)*1024}")
            a(f"buffer_load_dwordx4 v{10+rr}, s[24:27], s{40 if q==0 else 42} offen nt lds")
    a("s_mov_b32 m0, s45")
    a("buffer_load_dwordx4 v13, s[28:31], s43 offen nt lds")
    a("s_add_u32 m0, s45, 1024")
    a("s_mov_b32 exec_hi, 0")
    a("buffer_load_dwordx4 v14, s[28:31], s43 offen nt lds")
    a("s_mov_b64 exec, -1")
    a("v_and_b32 v2, 15, v1")
    a("v_lshrrev_b32 v3, 4, v1")
    a("v_mul_u32_u24 v4, 384, v2")
    a("v_add_u32 v4, s44, v4")
    a("v_and_b32 v5, 2, v2")
    a("v_xor_b32 v5, v5, v3")
    a("v_lshl_add_u32 v4, v5, 4, v4")
    a("v_and_b32 v5, 4, v2")
    a("v_lshlrev_b32 v5, 4, v5")
    a("v_add_u32 v10, v4, v5")
    a("v_sub_u32 v11, v4, v5")
    a("v_lshrrev_b32 v4, 2, v2")
    a("v_mul_u32_u24 v4, 384, v4")
    a("v_add_u32 v4, s45, v4")
    a("s_and_b32 s46, s3, 3"); a("s_lshl_b32 s46, s46, 1")
    a("s_and_b32 s47, s46, 2"); a("s_and_b32 s46, s46, 4"); a("s_lshl_b32 s46, s46, 4")
    a("v_xor_b32 v5, s47, v3")
    a("v_lshl_add_u32 v4, v5, 4, v4")
    a("v_add_u32 v12, s46, v4")
    a("v_subrev_u32 v13, s46, v4")
    a("v_lshlrev_b32 v8, 4, v1")
    a("s_mov_b32 s48, 0x3f803f80")
    a("v_mov_b32 v9, 1.0")
    a("s_waitcnt vmcnt(0)")
    if STAMPS:
        a("s_add_u32 s49, s3, 2")
        a("s_memrealtime s[90:91]"); a("s_waitcnt lgkmcnt(0)")
        a("v_mov_b32 v124, s90"); a("v_mov_b32 v125, s91"); a("v_mov_b32 v126, s49"); a("v_lshlrev_b32 v126, 3, v126")
        a("s_mov_b64 exec, 1"); a("buffer_store_dwordx2 v[124:125], v126, s[84:87], s88 offen"); a("s_mov_b64 exec, -1")
    X0, X1 = 20, 44
    for s_ in range(6):
        a(f"ds_read_b128 v[{X0+4*s_}:{X0+4*s_+3}], v{10 + (s_&1)} offset:{64*s_}")
        a(f"ds_read_b128 v[{X1+4*s_}:{X1+4*s_+3}], v{12 + (s_&1)} offset:{64*s_}")
    for r in range(14, 20):
        a(f"v_mov_b32 v{r}, 0")
    for s_ in range(6):
        a(f"s_waitcnt lgkmcnt({10 - 2*s_})")
        for k in range(4):
            x0, x1 = X0 + 4*s_ + k, X1 + 4*s_ + k
            b = k & 1
            a(f"v_dot2_f32_bf16 v{14+b}, v{x0}, s48, v{14+b}")
            a(f"v_dot2_f32_bf16 v{16+b}, v{x0}, v{x0}, v{16+b}")
            a(f"v_dot2_f32_bf16 v{18+b}, v{x0}, v{x1}, v{18+b}")
            a(f"v_dot2_f32_bf16 v{14+b}, v{x1}, s48, v{14+b}")
            a(f"v_dot2_f32_bf16 v{16+b}, v{x1}, v{x1}, v{16+b}")
    a("v_add_f32 v14, v14, v15")
    a("v_add_f32 v16, v16, v17")
    a("v_add_f32 v18, v18, v19")
    a("v_fmac_f32 v16, 2.0, v18")
    a("v_mfma_f32_16x16x4_f32 v[68:71], v14, v9, 0")
    a("v_mfma_f32_16x16x4_f32 v[72:75], v16, v9, 0")
    a(f"s_mov_b32 s49, {hex(f2u(1/192))}")
    a(f"v_mov_b32 v15, {hex(f2u(1e-5))}")
    for r in range(4):
        a(f"v_mul_f32 v{68+r}, s49, v{68+r}")
    for r in range(4):
        a(f"v_fma_f32 v{72+r}, v{72+r}, s49, v15")
    for r in range(4):
        a(f"v_fma_f32 v{72+r}, -v{68+r}, v{68+r}, v{72+r}")
    for r in range(4):
        a(f"v_max_f32 v{72+r}, v{72+r}, v15")
    for r in range(4):
        a(f"v_rsq_f32 v{72+r}, v{72+r}")
    a("s_barrier")
    QK = 76
    for s_ in range(6):
        a(f"ds_read_b128 v[{QK+4*s_}:{QK+4*s_+3}], v8 offset:{L_QK + 1024*s_}")
    a("s_mov_b32 s50, 0x3f803f80")
    for r in range(4):
        a(f"v_mov_b32 v{116+r}, s50")
    a("s_waitcnt lgkmcnt(0)")
    for s_ in range(6):
        c0 = "0" if s_ == 0 else "v[100:103]"
        c1 = "0" if s_ == 0 else "v[104:107]"
        c2 = "0" if s_ == 0 else "v[108:111]"
        q = f"v[{QK+4*s_}:{QK+4*s_+3}]"
        a(f"v_mfma_f32_16x16x32_bf16 v[100:103], v[{X0+4*s_}:{X0+4*s_+3}], {q}, {c0}")
        a(f"v_mfma_f32_16x16x32_bf16 v[104:107], v[{X1+4*s_}:{X1+4*s_+3}], {q}, {c1}")
        a(f"v_mfma_f32_16x16x32_bf16 v[108:111], v[116:119], {q}, {c2}")
    for r in range(4):
        a(f"v_add_f32 v{100+r}, v{100+r}, v{104+r}")
    for r in range(4):
        a(f"v_fma_f32 v{100+r}, -v{68+r}, v{108+r}, v{100+r}")
    for r in range(4):
        a(f"v_mul_f32 v{100+r}, v{100+r}, v{72+r}")
    a("v_max_f32 v14, v100, v101")
    a("v_max3_f32 v14, v14, v102, v103")
    xsum(a, 14, 15, "v_max_f32")
    a("v_mul_u32_u24 v16, 80, v2")
    a("s_lshl_b32 s50, s3, 2")
    a("v_add_u32 v17, s50, v16")
    a(f"ds_write_b32 v17, v14 offset:{L_MX}")
    a("s_waitcnt lgkmcnt(0)")
    a("s_barrier")
    for k in range(4):
        a(f"ds_read_b128 v[{20+4*k}:{23+4*k}], v16 offset:{L_MX + 16*k}")
    a("s_waitcnt lgkmcnt(0)")
    a("v_max3_f32 v14, v20, v21, v22")
    a("v_max3_f32 v15, v23, v24, v25")
    a("v_max3_f32 v14, v14, v26, v27")
    a("v_max3_f32 v15, v15, v28, v29")
    a("v_max3_f32 v14, v14, v30, v31")
    a("v_max3_f32 v15, v15, v32, v33")
    a("v_max_f32 v14, v14, v15")
    for r in range(4):
        a(f"v_sub_f32 v{100+r}, v{100+r}, v14")
    for r in range(4):
        a(f"v_exp_f32 v{100+r}, v{100+r}")
    for r in range(4):
        a(f"v_mul_f32 v{104+r}, v{100+r}, v{72+r}")
    a("v_cvt_pk_bf16_f32 v20, v104, v105")
    a("v_cvt_pk_bf16_f32 v21, v106, v107")
    a("s_lshr_b32 s50, s3, 1"); a("s_lshl_b32 s50, s50, 10"); a("s_and_b32 s51, s3, 1"); a("s_lshl_b32 s51, s51, 3")
    a("s_add_u32 s50, s50, s51")
    a("v_add_u32 v18, s50, v8")
    a(f"ds_write_b64 v18, v[20:21] offset:{L_PB}")
    a("v_lshlrev_b32 v104, 16, v20")
    a("v_and_b32 v105, 0xffff0000, v20")
    a("v_lshlrev_b32 v106, 16, v21")
    a("v_and_b32 v107, 0xffff0000, v21")
    a("v_add_f32 v22, v104, v105")
    a("v_add_f32 v23, v106, v107")
    a("v_add_f32 v22, v22, v23")
    a("v_cvt_pk_bf16_f32 v22, v22, v22")
    a("s_lshr_b32 s50, s3, 3"); a("s_lshl_b32 s50, s50, 10"); a("s_and_b32 s51, s3, 7"); a("s_lshl_b32 s51, s51, 1")
    a("s_add_u32 s50, s50, s51")
    a("v_add_u32 v18, s50, v8")
    a(f"ds_write_b16 v18, v22 offset:{L_PU}")
    a("v_add_f32 v24, v100, v101")
    a("v_add_f32 v25, v102, v103")
    a("v_add_f32 v24, v24, v25")
    a("v_mul_f32 v25, v104, v68")
    a("v_fmac_f32 v25, v105, v69")
    a("v_fmac_f32 v25, v106, v70")
    a("v_fmac_f32 v25, v107, v71")
    xsum(a, 24, 26)
    xsum(a, 25, 26)
    a(f"ds_write_b32 v17, v24 offset:{L_LB}")
    a(f"ds_write_b32 v17, v25 offset:{L_TB}")
    a("s_waitcnt lgkmcnt(0)")
    a("s_barrier")
    a("s_cmp_ge_u32 s3, 12")
    a("s_cbranch_scc1 L_s_ml")
    a("v_bfe_u32 v4, v1, 2, 4")
    a("v_mul_u32_u24 v5, 384, v4")
    a("v_and_b32 v6, 6, v4")
    a("v_bfe_u32 v7, v1, 1, 1")
    a("s_lshl_b32 s50, s3, 1")
    a("v_add_u32 v7, s50, v7")
    a("v_xor_b32 v6, v6, v7")
    a("v_lshl_add_u32 v5, v6, 4, v5")
    a("v_and_b32 v6, 1, v1")
    a("v_lshl_add_u32 v10, v6, 3, v5")
    a(f"v_add_u32 v10, {L_X0}, v10")
    a("v_add_u32 v11, 49152, v10")
    a("v_bfe_u32 v4, v1, 2, 2")
    a("v_lshl_add_u32 v5, v4, 2, v3")
    a("v_mul_u32_u24 v5, 384, v5")
    a("v_lshlrev_b32 v4, 1, v4")
    a("v_xor_b32 v4, v4, v7")
    a("v_lshl_add_u32 v5, v4, 4, v5")
    a("v_lshl_add_u32 v12, v6, 3, v5")
    a(f"v_add_u32 v12, {L_X1}, v12")
    for ks in range(7):
        a(f"ds_read_b128 v[{20+4*ks}:{23+4*ks}], v8 offset:{L_PB + 1024*ks}")
        for h in range(2):
            off = (32*ks + 16*h) * 384
            base = 10
            if ks >= 4:
                off -= 49152
                base = 11
            a(f"ds_read_b64_tr_b16 v[{56+4*ks+2*h}:{57+4*ks+2*h}], v{base} offset:{off}")
    for ks in range(2):
        a(f"ds_read_b128 v[{48+4*ks}:{51+4*ks}], v8 offset:{L_PU + 1024*ks}")
        for h in range(2):
            a(f"ds_read_b64_tr_b16 v[{84+4*ks+2*h}:{85+4*ks+2*h}], v12 offset:{(32*ks+16*h)*384}")
    for k in range(4):
        a(f"ds_read_b128 v[{92+4*k}:{95+4*k}], v16 offset:{L_TB + 16*k}")
    a("s_waitcnt lgkmcnt(0)")
    for ks in range(7):
        c = "0" if ks < 2 else f"v[{108+4*(ks&1)}:{111+4*(ks&1)}]"
        a(f"v_mfma_f32_16x16x32_bf16 v[{108+4*(ks&1)}:{111+4*(ks&1)}], v[{56+4*ks}:{59+4*ks}], v[{20+4*ks}:{23+4*ks}], {c}")
    for ks in range(2):
        d = 108 + 4 * ((ks + 1) & 1)
        a(f"v_mfma_f32_16x16x32_bf16 v[{d}:{d+3}], v[{84+4*ks}:{87+4*ks}], v[{48+4*ks}:{51+4*ks}], v[{d}:{d+3}]")
    for k in range(1, 14):
        a(f"v_add_f32 v92, v92, v{92+k}")
    for r in range(4):
        a(f"v_add_f32 v{108+r}, v{108+r}, v{112+r}")
    for r in range(4):
        a(f"v_sub_f32 v{108+r}, v{108+r}, v92")
    a("v_cvt_pk_bf16_f32 v20, v108, v109")
    a("v_cvt_pk_bf16_f32 v21, v110, v111")
    a("v_mul_u32_u24 v4, 384, v2")
    a("v_lshl_add_u32 v4, v3, 3, v4")
    a("s_lshl_b32 s50, s3, 5")
    a("v_add_u32 v4, s50, v4")
    a(f"ds_write_b64 v4, v[20:21] offset:{L_OUT}")
    a("s_waitcnt lgkmcnt(0)")
    a("s_barrier")
    a("s_cmp_ge_u32 s3, 6")
    a("s_cbranch_scc1 L_s_end")
    a("s_lshl_b32 s50, s3, 10")
    a("v_add_u32 v4, s50, v8")
    a(f"ds_read_b128 v[20:23], v4 offset:{L_OUT}")
    a("v_lshrrev_b32 v5, 4, v4")
    a("v_mul_u32_u24 v6, 2731, v5")
    a("v_lshrrev_b32 v6, 16, v6")
    a("v_mul_u32_u24 v7, 24, v6")
    a("v_sub_u32 v7, v5, v7")
    a(f"s_mov_b32 s51, {224*384}")
    a("v_mul_lo_u32 v6, v6, s51")
    a("v_lshl_add_u32 v6, v7, 4, v6")
    a("s_mul_i32 s52, s33, 384")
    srd(a, 36, 22, 16 * 224 * 384, WS_PART)
    a("s_waitcnt lgkmcnt(0)")
    a("buffer_store_dwordx4 v[20:23], v6, s[36:39], s52 offen")
    stamp(a, 18)
    a("s_endpgm")
    a.label("L_s_ml")
    a("s_cmp_eq_u32 s3, 12")
    a("s_cbranch_scc0 L_s_b4")
    for k in range(4):
        a(f"ds_read_b128 v[{20+4*k}:{23+4*k}], v16 offset:{L_LB + 16*k}")
    a("s_waitcnt lgkmcnt(0)")
    for k in range(1, 14):
        a(f"v_add_f32 v20, v20, v{20+k}")
    a("v_mov_b32 v21, v20")
    a("v_mov_b32 v20, v14")
    a(f"v_mul_u32_u24 v4, {224*8}, v2")
    a("s_lshl_b32 s52, s33, 3")
    srd(a, 36, 22, 16 * 224 * 8, WS_ML)
    a("s_mov_b64 exec, 0xffff")
    a("buffer_store_dwordx2 v[20:21], v4, s[36:39], s52 offen")
    a("s_mov_b64 exec, -1")
    a.label("L_s_b4")
    a("s_barrier")
    a.label("L_s_end")
    a("s_endpgm")
    a.label("L_s_helper")
    a("s_cmp_eq_u32 s3, 15")
    a("s_cbranch_scc1 L_s_poll")
    a("v_lshlrev_b32 v8, 4, v1")
    for r in range(20, 24):
        a(f"v_mov_b32 v{r}, 0")
    a(f"ds_write_b128 v8, v[20:23] offset:{L_PU}")
    a(f"ds_write_b128 v8, v[20:23] offset:{L_PU + 1024}")
    a("s_waitcnt lgkmcnt(0)")
    for _ in range(4):
        a("s_barrier")
    a("s_endpgm")
    a.label("L_s_poll")
    if STAMPS:
        a("v_mov_b32 v124, s64"); a("v_mov_b32 v125, s65"); a("v_mov_b32 v126, 0")
        a("s_mov_b64 exec, 1"); a("buffer_store_dwordx2 v[124:125], v126, s[84:87], s88 offen"); a("s_mov_b64 exec, -1")
    a(f"s_and_b32 s34, s33, {NREP-1}"); a("s_lshl_b32 s34, s34, 7")
    a(f"s_add_u32 s34, s34, {WS_FLAG}")
    a("s_add_u32 s56, s22, s34"); a("s_addc_u32 s57, s23, 0")
    srd(a, 36, 22, 1 << 20)
    a("v_lshlrev_b32 v8, 4, v1")
    a("s_mov_b32 s35, 0")
    a.label("L_s_pl")
    a("s_add_u32 s35, s35, 1")
    a("s_load_dwordx16 s[4:19], s[56:57], 0 glc")
    a("s_load_dwordx8 s[24:31], s[56:57], 64 glc")
    a("s_waitcnt lgkmcnt(0)")
    a("s_mov_b32 s48, 0")
    for p in range(NPROD):
        lo = 4 + 2*p if p < 8 else 24 + 2*(p-8)
        a(f"s_sub_u32 s40, s{lo}, s64"); a(f"s_subb_u32 s41, s{lo+1}, s65")
        a("s_add_u32 s40, s40, 4096"); a("s_addc_u32 s41, s41, 0")
        a("s_lshr_b32 s40, s40, 24"); a("s_or_b32 s40, s40, s41"); a("s_or_b32 s48, s48, s40")
    a("s_cmp_eq_u32 s48, 0")
    a("s_cbranch_scc1 L_s_go")
    a("s_cmp_gt_u32 s35, 0x40000")
    a("s_cbranch_scc1 L_s_go")
    a("s_sleep 2")
    a("s_branch L_s_pl")
    a.label("L_s_go")
    stamp(a, 16)
    for s_ in range(6):
        a(f"s_mov_b32 m0, {L_QK + 1024*s_}")
        a(f"s_mov_b32 s49, {WS_QK + 1024*s_}")
        a("buffer_load_dwordx4 v8, s[36:39], s49 offen sc0 sc1 lds")
    a("s_waitcnt vmcnt(0)")
    stamp(a, 1)
    for _ in range(4):
        a("s_barrier")
    a("s_endpgm")


def emit_main(a):
    name = "main_kernel"
    a.raw('.globl %s\n.p2align 8\n.type %s,@function\n%s:' % (name, name, name))
    a(f"s_cmp_ge_u32 s2, {NPROD + NSTR}")
    a("s_cbranch_scc1 L_main_end")
    a("s_memrealtime s[64:65]")
    a("s_load_dwordx16 s[4:19], s[0:1], 0")
    a("s_load_dwordx4 s[20:23], s[0:1], 64")
    a("v_lshrrev_b32 v2, 6, v0")
    a("v_and_b32 v1, 63, v0")
    a("v_readfirstlane_b32 s3, v2")
    a("s_waitcnt lgkmcnt(0)")
    if STAMPS:
        srd(a, 84, 22, 1 << 20, WS_STAMP)
        a("s_lshl_b32 s88, s2, 8")
    a(f"s_cmp_lt_u32 s2, {NPROD}")
    a("s_cbranch_scc1 L_prod")
    emit_stream(a)
    emit_producer(a)
    a.label("L_main_end")
    a("s_endpgm")
    a.raw(kd(name, 128, 96))


LR_WT = 0
LR_SC = 1024
LR_CTX = 1280
LR_T = 1792
LR_RED = 2304
LR_W = 14848
LDS_RED = 88576


def emit_reduce(a):
    name = "red_kernel"
    a.raw('.globl %s\n.p2align 8\n.type %s,@function\n%s:' % (name, name, name))
    a("s_cmp_ge_u32 s2, 16")
    a("s_cbranch_scc1 L_r_end")
    a("s_memrealtime s[64:65]")
    a("s_load_dwordx16 s[4:19], s[0:1], 0")
    a("s_load_dwordx4 s[20:23], s[0:1], 64")
    a("v_lshrrev_b32 v2, 6, v0")
    a("v_and_b32 v1, 63, v0")
    a("v_readfirstlane_b32 s3, v2")
    a("s_waitcnt lgkmcnt(0)")
    if STAMPS:
        srd(a, 84, 22, 1 << 20, WS_STAMP)
        a("s_lshl_b32 s88, s2, 8")
        a("s_cmp_lg_u32 s3, 0"); a("s_cbranch_scc1 L_r_ns")
        a("v_mov_b32 v124, s64"); a("v_mov_b32 v125, s65"); a(f"v_mov_b32 v126, {20*8}")
        a("s_mov_b64 exec, 1"); a("buffer_store_dwordx2 v[124:125], v126, s[84:87], s88 offen"); a("s_mov_b64 exec, -1")
        a.label("L_r_ns")
    srd(a, 24, 14, 73728)
    srd(a, 28, 16, 73728)
    srd(a, 32, 22, 16 * 224 * 384, WS_PART)
    srd(a, 36, 22, 16 * 224 * 8, WS_ML)
    a("s_mul_i32 s40, s2, 224"); a("s_mul_i32 s41, s3, 14"); a("s_add_u32 s40, s40, s41"); a("s_mul_i32 s42, s40, 384")
    a("v_lshlrev_b32 v2, 3, v1")
    a("s_mov_b32 exec_hi, 0xffff")
    R0 = 64
    for i in range(14):
        if i * 384 <= 4095:
            pass
        a(f"s_add_u32 s43, s42, {384*i}")
        a(f"buffer_load_dwordx2 v[{R0+2*i}:{R0+2*i+1}], v2, s[32:35], s43 offen")
    a("s_mov_b64 exec, -1")
    a("v_lshlrev_b32 v3, 3, v0")
    a(f"s_mul_i32 s44, s2, {224*8}")
    a("v_cmp_gt_u32 vcc, 224, v0")
    a("v_mov_b32 v10, 0xff800000")
    a("v_mov_b32 v11, 0")
    a("s_and_saveexec_b64 s[46:47], vcc")
    a("s_cbranch_execz L_r_noml")
    a("buffer_load_dwordx2 v[10:11], v3, s[36:39], s44 offen")
    a.label("L_r_noml")
    a("s_mov_b64 exec, s[46:47]")
    a("s_cmp_ge_u32 s3, 12")
    a("s_cbranch_scc1 L_r_nodma1")
    P = weight_dma(a, 24, 3, LR_W, 1, 12, "wv")
    weight_dma_issue(a, 24, 3, LR_W, P)
    tr_weight_addr(a, 4, 1, 3, LR_W, 5)
    a.label("L_r_nodma1")
    a("s_waitcnt vmcnt(0)")
    def wave_reduce(v_, vt, op):
        a(f"{op}_dpp v{v_}, v{v_}, v{v_} quad_perm:[1,0,3,2] row_mask:0xf bank_mask:0xf")
        a(f"{op}_dpp v{v_}, v{v_}, v{v_} quad_perm:[2,3,0,1] row_mask:0xf bank_mask:0xf")
        a(f"{op}_dpp v{v_}, v{v_}, v{v_} row_half_mirror row_mask:0xf bank_mask:0xf")
        a(f"{op}_dpp v{v_}, v{v_}, v{v_} row_mirror row_mask:0xf bank_mask:0xf")
        xsum(a, v_, vt, op)
    a("v_mov_b32 v22, v10")
    wave_reduce(22, 23, "v_max_f32")
    a("s_lshl_b32 s45, s3, 2")
    a("v_mov_b32 v24, s45")
    a(f"ds_write_b32 v24, v22 offset:{LR_SC}")
    a("s_waitcnt lgkmcnt(0)")
    a("s_barrier")
    a("v_mov_b32 v24, 0")
    a(f"ds_read_b128 v[28:31], v24 offset:{LR_SC}")
    a("s_cmp_ge_u32 s3, 12")
    a("s_cbranch_scc1 L_r_notr1")
    tr_weight_read(a, 96, 4)
    a.label("L_r_notr1")
    a("s_waitcnt lgkmcnt(0)")
    a("v_max3_f32 v22, v28, v29, v30")
    a("v_max_f32 v22, v22, v31")
    a("v_sub_f32 v23, v10, v22")
    a("v_exp_f32 v23, v23")
    a("v_mul_f32 v25, v23, v11")
    a("v_lshlrev_b32 v24, 2, v0")
    a("v_cmp_gt_u32 vcc, 256, v0")
    a("s_and_saveexec_b64 s[46:47], vcc")
    a("s_cbranch_execz L_r_now")
    a(f"ds_write_b32 v24, v23 offset:{LR_WT}")
    a.label("L_r_now")
    a("s_mov_b64 exec, s[46:47]")
    wave_reduce(25, 26, "v_add_f32")
    a("v_mov_b32 v24, s45")
    a(f"ds_write_b32 v24, v25 offset:{LR_SC + 64}")
    a("s_waitcnt lgkmcnt(0)")
    a("s_barrier")
    a("s_cmp_ge_u32 s3, 12")
    a("s_cbranch_scc1 L_r_nodma2")
    weight_dma_issue(a, 28, 3, LR_W, P)
    a.label("L_r_nodma2")
    a("s_mul_i32 s45, s3, 56")
    a("v_mov_b32 v24, s45")
    for k in range(7):
        a(f"ds_read_b64 v[{30+2*k}:{31+2*k}], v24 offset:{LR_WT + 8*k}")
    a("v_mov_b32 v24, 0")
    a(f"ds_read_b128 v[44:47], v24 offset:{LR_SC + 64}")
    for r in range(4):
        a(f"v_mov_b32 v{48+r}, 0")
    a("s_waitcnt lgkmcnt(0)")
    for i in range(14):
        lo, hi = R0 + 2*i, R0 + 2*i + 1
        a(f"v_lshlrev_b32 v52, 16, v{lo}")
        a(f"v_and_b32 v53, 0xffff0000, v{lo}")
        a(f"v_lshlrev_b32 v54, 16, v{hi}")
        a(f"v_and_b32 v55, 0xffff0000, v{hi}")
        for r in range(4):
            a(f"v_fmac_f32 v{48+r}, v{52+r}, v{30+i}")
    a("v_add_f32 v44, v44, v45"); a("v_add_f32 v46, v46, v47"); a("v_add_f32 v44, v44, v46")
    a("v_rcp_f32 v44, v44")
    a("s_mul_i32 s45, s3, 768")
    a("v_lshlrev_b32 v24, 4, v1")
    a("v_add_u32 v24, s45, v24")
    a("s_mov_b32 exec_hi, 0xffff")
    a(f"ds_write_b128 v24, v[48:51] offset:{LR_RED}")
    a("s_mov_b64 exec, -1")
    a("s_waitcnt lgkmcnt(0)")
    a("s_barrier")
    a("v_cmp_gt_u32 vcc, 192, v0")
    a("s_and_saveexec_b64 s[46:47], vcc")
    a("s_cbranch_execz L_r_nosum")
    a("v_lshlrev_b32 v24, 2, v0")
    for k in range(16):
        a(f"ds_read_b32 v{30+k+16}, v24 offset:{LR_RED + 768*k}")
    a("s_waitcnt lgkmcnt(0)")
    for k in range(1, 16):
        a(f"v_add_f32 v46, v46, v{46+k}")
    a("v_mul_f32 v46, v46, v44")
    a("v_cvt_pk_bf16_f32 v46, v46, v46")
    a("v_lshlrev_b32 v24, 1, v0")
    a(f"ds_write_b16 v24, v46 offset:{LR_CTX}")
    a.label("L_r_nosum")
    a("s_mov_b64 exec, s[46:47]")
    a("s_waitcnt lgkmcnt(0)")
    a("s_barrier")
    a("s_cmp_ge_u32 s3, 12")
    a("s_cbranch_scc1 L_r_skip1")
    a("v_lshrrev_b32 v24, 4, v1")
    a("v_lshlrev_b32 v24, 4, v24")
    for s_ in range(6):
        a(f"ds_read_b128 v[{30+4*s_}:{33+4*s_}], v24 offset:{LR_CTX + 64*s_}")
    a("s_waitcnt lgkmcnt(0)")
    a("v_mfma_f32_16x16x32_bf16 v[56:59], v[96:99], v[30:33], 0")
    for s_ in range(1, 6):
        a(f"v_mfma_f32_16x16x32_bf16 v[56:59], v[{96+4*s_}:{99+4*s_}], v[{30+4*s_}:{33+4*s_}], v[56:59]")
    a("v_cvt_pk_bf16_f32 v60, v56, v57")
    a("v_cvt_pk_bf16_f32 v61, v58, v59")
    a("v_lshrrev_b32 v25, 4, v1")
    a("v_lshlrev_b32 v25, 3, v25")
    a("s_lshl_b32 s45, s3, 5")
    a("v_add_u32 v25, s45, v25")
    a("v_and_b32 v26, 15, v1")
    a("v_cmp_eq_u32 vcc, 0, v26")
    a("s_and_saveexec_b64 s[46:47], vcc")
    a("s_cbranch_execz L_r_now2")
    a(f"ds_write_b64 v25, v[60:61] offset:{LR_T}")
    a.label("L_r_now2")
    a("s_mov_b64 exec, s[46:47]")
    srd(a, 40, 4, 6144)
    srd(a, 48, 18, 6144)
    a("s_mul_i32 s45, s2, 384")
    a("buffer_load_dwordx2 v[62:63], v25, s[40:43], s45 offen")
    a.label("L_r_skip1")
    a("s_waitcnt vmcnt(0) lgkmcnt(0)")
    a("s_barrier")
    a("s_cmp_ge_u32 s3, 12")
    a("s_cbranch_scc1 L_r_end")
    tr_weight_read(a, 96, 4)
    for s_ in range(6):
        a(f"ds_read_b128 v[{30+4*s_}:{33+4*s_}], v24 offset:{LR_T + 64*s_}")
    a("s_waitcnt lgkmcnt(0)")
    a("v_mfma_f32_16x16x32_bf16 v[56:59], v[96:99], v[30:33], 0")
    for s_ in range(1, 6):
        a(f"v_mfma_f32_16x16x32_bf16 v[56:59], v[{96+4*s_}:{99+4*s_}], v[{30+4*s_}:{33+4*s_}], v[56:59]")
    a("v_lshlrev_b32 v52, 16, v62")
    a("v_and_b32 v53, 0xffff0000, v62")
    a("v_lshlrev_b32 v54, 16, v63")
    a("v_and_b32 v55, 0xffff0000, v63")
    for r in range(4):
        a(f"v_add_f32 v{56+r}, v{56+r}, v{52+r}")
    a("v_cvt_pk_bf16_f32 v60, v56, v57")
    a("v_cvt_pk_bf16_f32 v61, v58, v59")
    a("v_cmp_eq_u32 vcc, 0, v26")
    a("s_and_saveexec_b64 s[46:47], vcc")
    a("s_cbranch_execz L_r_end")
    a("buffer_store_dwordx2 v[60:61], v25, s[48:51], s45 offen")
    stamp(a, 21)
    a.label("L_r_end")
    a("s_endpgm")
    a.raw(kd(name, 128, 96))


def gen(stamps=False):
    global STAMPS
    STAMPS = stamps
    a = Asm()
    a.raw(HDR + f"; @launch kernel=main_kernel grid=({NPROD+NSTR},1,1) block=(1024,1,1) lds={LDS_MAIN}\n"
          f"; @launch kernel=red_kernel grid=(16,1,1) block=(1024,1,1) lds={LDS_RED}")
    a.raw('.amdgcn_target "amdgcn-amd-amdhsa--gfx950"\n.text')
    emit_main(a)
    emit_reduce(a)
    return a.text()


if __name__ == "__main__":
    open("v1.s", "w").write(gen(False))
    open("v1_st.s", "w").write(gen(True))
```
